```python
import torch

def _softmax(x, axis=-1):
    return torch.softmax(x, dim=axis)
def _gelu(x):
    return torch.nn.functional.gelu(x, approximate="tanh")
def _silu(x):
    return torch.nn.functional.silu(x)
def _sigmoid(x):
    return torch.sigmoid(x)
def _layernorm(x, axis=-1, eps=1e-5):
    m = x.mean(dim=axis, keepdim=True)
    v = x.var(dim=axis, keepdim=True, unbiased=False)
    return (x - m) / torch.sqrt(v + eps)
def _scatter_add(tgt, idx, src, axis=0):
    return tgt.clone().index_add_(axis, idx, src)
def _segment_sum(src, seg, n):
    out = torch.zeros((n,) + src.shape[1:], dtype=src.dtype)
    return out.index_add_(0, seg, src)
def _pad(x, pw):
    flat = tuple(v for pair in reversed(pw) for v in pair)
    return torch.nn.functional.pad(x, flat)

kernel_name = 'concat_heads__mha_block_cached__gqa_block_cached__near_ridge'

def setup_inputs():

    _w = (lambda a: (lambda t: t.to(torch.bfloat16) if t.is_floating_point() else t)(torch.as_tensor(a)))
    def _A_setup():
        B, Sq, D = 16, 48, 1024
        H, Sk, Dh = 32, 48, 128
        return {
            "x": _w((lambda *s: torch.randn(*s, dtype=torch.bfloat16) * 0.8)(B, Sq, D)),
            "k_cache": _w((lambda *s: torch.randn(*s, dtype=torch.bfloat16) * 0.8)(B, H, Sk, Dh)),
            "v_cache": _w((lambda *s: torch.randn(*s, dtype=torch.bfloat16) * 0.05)(B, H, Sk, Dh)),
            "wq": _w((lambda *s: torch.randn(*s, dtype=torch.bfloat16) * 0.8)(D, H * Dh) * (D ** -0.5)),
            "wo": _w((lambda *s: torch.randn(*s, dtype=torch.bfloat16) * 0.05)(H * Dh, D) * ((H * Dh) ** -0.5)),
        }
    _A_in = _A_setup()

    def _B_setup():
        B, Sq, D = 16, 48, 1024
        Hq, Hkv, Sk, Dh = 32, 32, 48, 128
        assert Hq % Hkv == 0, (Hq, Hkv)
        return {
            "x": _w((lambda *s: torch.randn(*s, dtype=torch.bfloat16) * 0.8)(B, Sq, D)),
            "k_cache": _w((lambda *s: torch.randn(*s, dtype=torch.bfloat16) * 0.8)(B, Hkv, Sk, Dh)),
            "v_cache": _w((lambda *s: torch.randn(*s, dtype=torch.bfloat16) * 0.05)(B, Hkv, Sk, Dh)),
            "wq": _w((lambda *s: torch.randn(*s, dtype=torch.bfloat16) * 0.8)(D, Hq * Dh) * (D ** -0.5)),
            "wo": _w((lambda *s: torch.randn(*s, dtype=torch.bfloat16) * 0.05)(Hq * Dh, D) * ((Hq * Dh) ** -0.5)),
        }
    _B_in = _B_setup()

    return {
        "A_x": _A_in["x"],
        "A_k_cache": _A_in["k_cache"],
        "A_v_cache": _A_in["v_cache"],
        "A_wq": _A_in["wq"],
        "A_wo": _A_in["wo"],
        "B_x": _B_in["x"],
        "B_k_cache": _B_in["k_cache"],
        "B_v_cache": _B_in["v_cache"],
        "B_wq": _B_in["wq"],
        "B_wo": _B_in["wo"],
    }

def reference(A_x, A_k_cache, A_v_cache, A_wq, A_wo, B_x, B_k_cache, B_v_cache, B_wq, B_wo):
    def _A_ref(x, k_cache, v_cache, wq, wo):
        B, Sq, D = x.shape
        H, Dh = 32, 128
        q = (lambda x, *d: x.permute(*d))((x @ wq).reshape(B, Sq, H, Dh), 0, 2, 1, 3)
        scores = torch.einsum("bhqd,bhkd->bhqk", q, k_cache) * (Dh ** -0.5)
        p = _softmax(scores, axis=-1)
        o = torch.einsum("bhqk,bhkd->bhqd", p, v_cache)
        return (lambda x, *d: x.permute(*d))(o, 0, 2, 1, 3).reshape(B, Sq, H * Dh) @ wo

    def _B_ref(x, k_cache, v_cache, wq, wo):
        B, Sq, D = x.shape
        Hq, Dh = 32, 128
        Hkv = k_cache.shape[1]
        rep = Hq // Hkv
        q = (lambda x, *d: x.permute(*d))((x @ wq).reshape(B, Sq, Hq, Dh), 0, 2, 1, 3)
        k = (lambda x, n, axis: torch.repeat_interleave(x, n, dim=axis))(k_cache, rep, axis=1)
        v = (lambda x, n, axis: torch.repeat_interleave(x, n, dim=axis))(v_cache, rep, axis=1)
        scores = torch.einsum("bhqd,bhkd->bhqk", q, k) * (Dh ** -0.5)
        p = _softmax(scores, axis=-1)
        o = torch.einsum("bhqk,bhkd->bhqd", p, v)
        return (lambda x, *d: x.permute(*d))(o, 0, 2, 1, 3).reshape(B, Sq, Hq * Dh) @ wo

    a = _A_ref(A_x, A_k_cache, A_v_cache, A_wq, A_wo)
    b = _B_ref(B_x, B_k_cache, B_v_cache, B_wq, B_wo)
    return torch.concatenate([a, b], axis=-1)
```

```python
KNAME = "concat_heads__mha_block_cached__gqa_block_cached__near_ridge_kernel"

class A:
    def __init__(self): self.l = []
    def __call__(self, s=""):
        for x in s.split("\n"):
            self.l.append(x)
    def lab(self, n): self.l.append(n + ":")
    def text(self): return "\n".join(self.l) + "\n"

def header(launches, comment=""):
    o = []
    for c in comment.split("\n"):
        if c: o.append("; " + c)
    for k, g, b, lds in launches:
        if k is None:
            o.append(f"; @launch grid=({g},1,1) block=({b},1,1) lds={lds}")
        else:
            o.append(f"; @launch kernel={k} grid=({g},1,1) block=({b},1,1) lds={lds}")
    o.append('.amdgcn_target "amdgcn-amd-amdhsa--gfx950"')
    o.append(".text")
    return "\n".join(o) + "\n"

def kstart(name):
    return f".globl {name}\n.p2align 8\n.type {name},@function\n{name}:\n"

def kdesc(name, vgpr, accum, sgpr=102):
    return f""".amdhsa_kernel {name}
  .amdhsa_next_free_vgpr {vgpr}
  .amdhsa_next_free_sgpr {sgpr}
  .amdhsa_accum_offset {accum}
  .amdhsa_group_segment_fixed_size 0
  .amdhsa_kernarg_size 104
  .amdhsa_user_sgpr_count 2
  .amdhsa_user_sgpr_kernarg_segment_ptr 1
  .amdhsa_system_sgpr_workgroup_id_x 1
  .amdhsa_float_denorm_mode_32 3
.end_amdhsa_kernel
"""
def rodata(descs):
    return '.section .rodata,"a"\n' + "".join(".p2align 6\n" + d for d in descs)

def srd(a, s, lo, hi, nbytes):
    a(f"s_mov_b32 s{s}, s{lo}")
    a(f"s_and_b32 s{s+1}, s{hi}, 0xffff")
    a(f"s_mov_b32 s{s+2}, {nbytes}")
    a(f"s_mov_b32 s{s+3}, 0x20000")
```

```python
import sys
sys.path.insert(0, "tools")
from asm import *

X_BYTES = 768 * 2048
W_BYTES = 1024 * 8192
KV_BYTES = 16 * 32 * 48 * 256
OUT_BYTES = 16 * 48 * 2048 * 2
O_WS = 0
O_WS_BYTES = 256 * 49152
P_WS = O_WS_BYTES
P_WS_BYTES = 256 * 49152
TS_WS = 64 << 20
SM_SCALE = 0.08838834764831845 * 1.4426950408889634

XOFF = {0: 6144, 1: 12288, 2: 0}
XW = 28672
XBASE = 49152
KOFF = 16384
VOFF = 0


def f32hex(x):
    import struct
    return "0x%08x" % struct.unpack("<I", struct.pack("<f", x))[0]


def interleave(a, mf, fill, first=0, per=1):
    fi = 0
    for n, m in enumerate(mf):
        a(m)
        if n >= first:
            for _ in range(per):
                if fi < len(fill):
                    a(fill[fi]); fi += 1
    while fi < len(fill):
        a(fill[fi]); fi += 1


def merge(primary, secondary, slots):
    out = list(primary)
    while len(out) <= max(slots, default=-1):
        out.append("")
    for s, g in zip(slots, secondary):
        out[s] = (out[s] + "\n" + g) if out[s] else g
    return [o for o in out]


class Stamp:
    def __init__(self, on): self.on = on; self.n = 0
    def __call__(self, a):
        if self.on and self.n < 14:
            a(f"s_memtime s[{64+2*self.n}:{65+2*self.n}]")
            self.n += 1
    def real(self, a, reg):
        if self.on: a(f"s_memrealtime s[{reg}:{reg+1}]")
    def dump(self, a, kidx, wave_s, srd_tmp, ptr_lo, ptr_hi):
        if not self.on: return
        a("s_memrealtime s[62:63]")
        a("s_waitcnt lgkmcnt(0)")
        a(f"s_add_u32 s{srd_tmp}, s{ptr_lo}, {TS_WS + kidx*65536*4}")
        a(f"s_addc_u32 s{srd_tmp+1}, s{ptr_hi}, 0")
        a(f"s_and_b32 s{srd_tmp+1}, s{srd_tmp+1}, 0xffff")
        a(f"s_mov_b32 s{srd_tmp+2}, {65536*4}")
        a(f"s_mov_b32 s{srd_tmp+3}, 0x20000")
        a(f"s_lshl_b32 s3, s2, 2\ns_add_u32 s3, s3, s{wave_s}\ns_lshl_b32 s3, s3, 6")
        a("v_mov_b32 v2, s3")
        vals = ["s60", "s62"] + [f"s{64+2*k}" for k in range(14)]
        for k, v in enumerate(vals):
            if k >= 2 + self.n: break
            a(f"v_mov_b32 v3, {v}")
            a(f"buffer_store_dword v3, v2, s[{srd_tmp}:{srd_tmp+3}], 0 offen offset:{4*k}")
        a("s_waitcnt vmcnt(0)")


def decode_wg(a):
    a("s_and_b32 s3, s2, 7")
    a("s_lshr_b32 s28, s3, 2")
    a("s_and_b32 s27, s3, 3")
    a("s_lshr_b32 s3, s2, 3")
    a("s_and_b32 s25, s3, 7")
    a("s_lshr_b32 s26, s3, 3")
    a("s_mul_i32 s3, s28, 40")
    a("s_add_u32 s36, s0, s3")
    a("s_addc_u32 s37, s1, 0")


def mf32(d, A_, B_, c=None):
    c = c if c is not None else d
    return f"v_mfma_f32_16x16x32_bf16 {d}, {A_}, {B_}, {c}"


def vr(b, n=4): return f"v[{b}:{b+n-1}]"
def ar(b, n=4): return f"a[{b}:{b+n-1}]"


ACC = 160
def acc(dt, qt): return ACC + (dt * 3 + qt) * 4


def gemm_mfmas(setA, Bregs, first):
    out = []
    for dt in range(8):
        for qt in range(3):
            d = vr(acc(dt, qt))
            out.append(mf32(d, ar(setA + 4 * dt), Bregs[qt], "0" if first else d))
    return out


def k1_body(a, o, st):
    nt_kv = " nt" if o.get("nt_kv", True) else ""
    fw = o.get("fw", ""); fx = o.get("fx", "")
    decode_wg(a)
    a("s_load_dwordx2 s[40:41], s[36:37], 0")
    a("s_load_dwordx2 s[42:43], s[36:37], 8")
    a("s_load_dwordx2 s[44:45], s[36:37], 16")
    a("s_load_dwordx2 s[46:47], s[36:37], 24")
    a("s_load_dwordx2 s[48:49], s[0:1], 96")
    a("v_and_b32 v1, 63, v0\nv_lshrrev_b32 v2, 6, v0")
    a("v_lshrrev_b32 v3, 4, v1")
    a("v_readfirstlane_b32 s24, v2")
    a("v_and_b32 v4, 15, v1")
    a("s_lshl_b32 s29, s26, 2\ns_lshl_b32 s3, s25, 1\ns_add_u32 s29, s29, s3")
    if o.get("norot"): a("s_mov_b32 s29, 0")
    a("s_and_b32 s29, s29, 15")
    a("s_lshl_b32 s32, s24, 12")
    a(f"s_mul_i32 s33, s24, {XW}\ns_add_u32 s33, s33, {XBASE}")
    a("s_lshl_b32 s34, s27, 3\ns_add_u32 s34, s34, s25")
    a("s_lshl_b32 s35, s34, 8")
    a("s_lshl_b32 s3, s24, 4")
    for i in range(4):
        a(f"v_or_b32 v5, {((i >> 1) & 1) << 2}, v3\nv_lshlrev_b32 v5, 1, v5\nv_xor_b32 v5, v5, v4\nv_lshlrev_b32 v5, 4, v5")
        a(f"v_add_u32 v6, s3, v3\nv_add_u32 v6, {4*i}, v6\nv_lshlrev_b32 v6, 13, v6")
        a(f"v_add3_u32 v5, v5, v6, s35\nv_subrev_u32 v{8+i}, {1024*i}, v5")
    a("s_mul_i32 s3, s26, 192\ns_mul_i32 s38, s24, 48\ns_add_u32 s38, s38, s3")
    a("v_lshrrev_b32 v6, 3, v1\nv_and_b32 v7, 7, v1")
    for i in range(6):
        a(f"v_add_u32 v5, {4*(i&1)}, v3\nv_xor_b32 v5, v5, v7\nv_lshlrev_b32 v5, 4, v5")
        a(f"v_add_u32 v2, {8*i}, v6\nv_add_u32 v2, s38, v2\nv_lshlrev_b32 v2, 11, v2\nv_add_u32 v5, v5, v2")
        a(f"v_subrev_u32 v{12+i}, {1024*(i&3)}, v5")
    a("s_waitcnt lgkmcnt(0)")
    srd(a, 4, 40, 41, X_BYTES)
    srd(a, 8, 46, 47, W_BYTES)
    srd(a, 12, 42, 43, KV_BYTES)
    srd(a, 16, 44, 45, KV_BYTES)
    srd(a, 20, 48, 49, O_WS + O_WS_BYTES)
    st.real(a, 60); st(a)

    def stage_scalars():
        return "s_lshl_b32 s30, s29, 19\ns_lshl_b32 s31, s29, 7\ns_add_u32 s29, s29, 1\ns_and_b32 s29, s29, 15"

    def dma_groups(buf):
        g = []
        for i in range(4):
            g.append(f"buffer_load_dwordx4 v{8+i}, s[8:11], s30 offen offset:{1024*i}{fw} lds")
        for i in range(6):
            g.append(f"buffer_load_dwordx4 v{12+i}, s[4:7], s31 offen offset:{1024*(i&3)}{fx} lds")
        m0 = {0: f"s_add_u32 m0, s32, {buf*16384}", 4: f"s_add_u32 m0, s33, {XOFF[buf]}", 8: f"s_add_u32 m0, s33, {XOFF[buf]+4096}"}
        return g, m0

    for s in range(3):
        a(stage_scalars())
        g, m0 = dma_groups(s)
        for i in range(10):
            if i in m0: a(m0[i] + "\ns_nop 0")
            a(g[i])
    a("v_lshrrev_b32 v5, 2, v4\nv_and_b32 v6, 3, v1")
    a("v_lshl_add_u32 v7, v3, 3, v5\nv_lshlrev_b32 v7, 8, v7\nv_lshl_add_u32 v7, v6, 3, v7")
    a("v_and_b32 v2, 1, v3\nv_lshl_or_b32 v2, v2, 2, v5\nv_lshlrev_b32 v2, 5, v2")
    a("v_add_u32 v20, v7, v2")
    for dt in range(1, 8):
        a(f"v_xor_b32 v{20+dt}, {dt*32}, v20")
    a("v_lshrrev_b32 v5, 1, v4\nv_xor_b32 v5, v5, v3\nv_lshlrev_b32 v5, 4, v5\nv_lshl_add_u32 v5, v4, 7, v5\nv_add_u32 v28, s33, v5")
    a("v_xor_b32 v29, 64, v28")
    for i in range(4):
        a(f"v_add_u32 v5, {4*i}, v3\nv_xor_b32 v5, v5, v4\nv_lshlrev_b32 v5, 4, v5\nv_lshl_add_u32 v{30+i}, v3, 8, v5")
    for i in range(2):
        a(f"v_add_u32 v5, {4*i}, v3\nv_lshlrev_b32 v5, 1, v5\nv_xor_b32 v5, v5, v4\nv_lshlrev_b32 v5, 4, v5\nv_lshl_add_u32 v{34+i}, v3, 8, v5")
    a("v_lshrrev_b32 v5, 1, v3\nv_xor_b32 v5, v5, v4\nv_lshlrev_b32 v5, 4, v5\nv_lshl_add_u32 v5, v4, 8, v5")
    a(f"v_and_b32 v6, 1, v3\nv_lshl_add_u32 v5, v6, 3, v5\ns_add_u32 s3, s33, {KOFF}\nv_add_u32 v36, s3, v5")
    for e in range(1, 8):
        a(f"v_xor_b32 v{36+e}, {e*32}, v36")
    a("v_lshrrev_b32 v5, 2, v4\nv_and_b32 v6, 3, v1")
    a("v_lshl_add_u32 v7, v3, 2, v5\nv_lshlrev_b32 v2, 8, v7\nv_lshl_add_u32 v2, v6, 3, v2")
    a(f"v_and_b32 v7, 7, v7\nv_lshl_add_u32 v2, v7, 5, v2\ns_add_u32 s3, s33, {VOFF}\nv_add_u32 v44, s3, v2")
    for dt in range(1, 8):
        a(f"v_xor_b32 v{44+dt}, {dt*32}, v44")
    a("v_lshlrev_b32 v52, 4, v1")
    a("s_lshl_b32 s3, s28, 2\ns_add_u32 s3, s3, s26\ns_lshl_b32 s3, s3, 2\ns_add_u32 s3, s3, s27\ns_lshl_b32 s3, s3, 3\ns_add_u32 s3, s3, s25")
    a(f"s_mul_i32 s39, s3, 49152\ns_mul_i32 s3, s24, 3072\ns_add_u32 s39, s39, s3\ns_add_u32 s39, s39, {O_WS}")
    a("s_lshl_b32 s3, s26, 2\ns_add_u32 s3, s3, s24\ns_lshl_b32 s3, s3, 5\ns_add_u32 s3, s3, s34\ns_mul_i32 s38, s3, 12288")

    def reads(t, kk, dst):
        buf = t % 3
        r = []
        for qt in range(3):
            r.append(f"ds_read_b128 {ar(64+12*dst+4*qt)}, v{28+kk} offset:{XOFF[buf]+qt*2048}")
        for dt in range(8):
            for hf in range(2):
                r.append(f"ds_read_b64_tr_b16 {ar(32*dst+4*dt+2*hf,2)}, v{20+dt} offset:{buf*16384+kk*8192+hf*1024}")
        return r

    def kv_dma(kind, i):
        if kind == "K":
            pre = f"s_add_u32 m0, s33, {KOFF+4096*(i>>2)}\ns_add_u32 s35, s38, {4096*(i>>2)}"
            return pre, f"buffer_load_dwordx4 v{30+(i&3)}, s[12:15], s35 offen offset:{1024*(i&3)}{nt_kv} lds"
        pre = f"s_add_u32 m0, s33, {VOFF+4096*(i>>2)}\ns_add_u32 s35, s38, {4096*(i>>2)}"
        return pre, f"buffer_load_dwordx4 v{34+(i&1)}, s[16:19], s35 offen offset:{1024*(i&3)}{nt_kv} lds"

    def kv_fill(kind, idxs):
        groups = []
        last_hi = None
        out = []
        for i in idxs:
            pre, d = kv_dma(kind, i)
            if (i >> 2) != last_hi:
                out.append(("pre", pre)); last_hi = i >> 2
            out.append(("dma", d))
        return out

    a("s_waitcnt vmcnt(20)\ns_barrier")
    for r in reads(0, 0, 0): a(r)
    a("s_waitcnt lgkmcnt(0)")
    st(a)
    Bs = [[ar(64 + 12 * s + 4 * q) for q in range(3)] for s in range(2)]
    NST = 16
    nodma = o.get("nodma"); nords = o.get("nords")
    for t in range(NST):
        fill = reads(t, 1, 1)
        if nords: fill = [""] * 19
        extra = []
        if 1 <= t and t + 2 < NST:
            g, m0 = dma_groups((t + 2) % 3)
            extra = [(1, g[5]), (6, g[6]), (11, g[7]), (15, m0[8]), (16, g[8]), (21, g[9])]
        elif t == 14:
            out = kv_fill("K", range(6, 12))
            slots = [1, 3, 6, 9, 11, 14, 17, 21]
            extra = list(zip(slots, [x[1] for x in out]))
        if nodma: extra = []
        fl = fill + [""] * (24 - len(fill))
        for s, gtxt in extra:
            fl[s] = (fl[s] + "\n" + gtxt) if fl[s] else gtxt
        interleave(a, gemm_mfmas(0, Bs[0], t == 0), fl)
        if t < NST - 1:
            n = 10 if t <= 13 else 12
            if t == 13: n = 10
            if nodma: n = 0
            a(f"s_waitcnt vmcnt({n}) lgkmcnt(0)\ns_barrier")
        else:
            a("s_waitcnt vmcnt(6) lgkmcnt(0)")
        extra = []
        if t + 1 < NST:
            fill = reads(t + 1, 0, 0)
            if nords: fill = [""] * 19
        else:
            fill = []
            for kt in range(3):
                for p in range(4):
                    for s in range(2):
                        fill.append(f"ds_read_b64 {ar(96+(kt*4+p)*4+2*s,2)}, v{36+2*p+s} offset:{kt*4096}")
        if t + 3 < NST:
            g, m0 = dma_groups(t % 3)
            extra = [(0, stage_scalars() + "\n" + m0[0]), (1, g[0]), (6, g[1]), (11, g[2]), (16, g[3]), (20, m0[4]), (21, g[4])]
        elif t == 13:
            out = kv_fill("K", range(0, 6))
            extra = list(zip([0, 1, 5, 9, 13, 15, 17, 21], [x[1] for x in out]))
        elif t == 14:
            out = kv_fill("V", range(0, 6))
            extra = list(zip([0, 1, 5, 9, 13, 15, 17, 21], [x[1] for x in out]))
        elif t == 15:
            out = kv_fill("V", range(6, 12))
            extra = list(zip([0, 1, 5, 9, 11, 13, 17, 21], [x[1] for x in out]))
        if nodma and t < 13: extra = []
        fl = fill + [""] * (24 - len(fill))
        for s, gtxt in extra:
            fl[s] = (fl[s] + "\n" + gtxt) if fl[s] else gtxt
        interleave(a, gemm_mfmas(32, Bs[1], False), fl)
        if t + 1 < NST:
            a("s_waitcnt lgkmcnt(0)")
        if t in (3, 7, 11): st(a)
    st(a)
    Q = lambda qt, p: 100 + (qt * 4 + p) * 4
    S = lambda kt, qt: 64 + (qt * 3 + kt) * 4
    for qt in range(3):
        for p in range(4):
            for h in range(2):
                t0 = acc(2 * p + h, qt)
                a(f"v_cvt_pk_bf16_f32 v{Q(qt,p)+2*h}, v{t0}, v{t0+1}")
                a(f"v_cvt_pk_bf16_f32 v{Q(qt,p)+2*h+1}, v{t0+2}, v{t0+3}")
    a("s_waitcnt lgkmcnt(0)")
    a("s_nop 1")
    for p in range(4):
        for qt in range(3):
            for kt in range(3):
                d = vr(S(kt, qt))
                a(mf32(d, ar(96 + (kt * 4 + p) * 4), vr(Q(qt, p)), "0" if p == 0 else d))
    st(a)
    a("s_waitcnt vmcnt(0)")
    for dt in range(8):
        for kt in range(3):
            a(f"ds_read_b64_tr_b16 {ar(144+6*dt+2*kt,2)}, v{44+dt} offset:{kt*4096}")
    a(f"s_mov_b32 s34, {f32hex(SM_SCALE)}")
    P = lambda qt: 100 + qt * 16
    for qt in range(3):
        s = [S(kt, qt) + r for kt in range(3) for r in range(4)]
        a(f"v_max3_f32 v56, v{s[0]}, v{s[1]}, v{s[2]}")
        for k in range(3, 11, 2):
            a(f"v_max3_f32 v56, v56, v{s[k]}, v{s[k+1]}")
        a(f"v_max_f32 v56, v56, v{s[11]}")
        a("v_mov_b32 v57, v56\ns_nop 1\nv_permlane32_swap_b32 v56, v57\ns_nop 1\nv_max_f32 v56, v56, v57")
        a("v_mov_b32 v57, v56\ns_nop 1\nv_permlane16_swap_b32 v56, v57\ns_nop 1\nv_max_f32 v56, v56, v57")
        a("v_mul_f32 v56, s34, v56")
        for r in s:
            a(f"v_fma_f32 v{r}, v{r}, s34, -v56")
        for r in s:
            a(f"v_exp_f32 v{r}, v{r}")
        a("s_nop 0")
        a(f"v_add_f32 v57, v{s[0]}, v{s[1]}")
        for r in s[2:]:
            a(f"v_add_f32 v57, v57, v{r}")
        a("v_mov_b32 v58, v57\ns_nop 1\nv_permlane32_swap_b32 v57, v58\ns_nop 1\nv_add_f32 v57, v57, v58")
        a("v_mov_b32 v58, v57\ns_nop 1\nv_permlane16_swap_b32 v57, v58\ns_nop 1\nv_add_f32 v57, v57, v58")
        a("v_rcp_f32 v57, v57\ns_nop 0")
        for r in s:
            a(f"v_mul_f32 v{r}, v{r}, v57")
        for k in range(6):
            a(f"v_cvt_pk_bf16_f32 v{P(qt)+k}, v{s[2*k]}, v{s[2*k+1]}")
    st(a)
    a("s_waitcnt lgkmcnt(0)")
    a("s_nop 1")
    for qt in range(3):
        for dt in range(8):
            a(mf32(vr(acc(dt, qt)), ar(144 + 6 * dt), vr(P(qt)), "0"))
        for dt in range(8):
            d = vr(acc(dt, qt))
            a(f"v_mfma_f32_16x16x16_bf16 {d}, {ar(144+6*dt+4,2)}, {vr(P(qt)+4,2)}, {d}")
    a("s_nop 7")
    st(a)
    for qt in range(3):
        for p in range(4):
            for h in range(2):
                t0 = acc(2 * p + h, qt)
                a(f"v_cvt_pk_bf16_f32 v{Q(qt,p)+2*h}, v{t0}, v{t0+1}")
                a(f"v_cvt_pk_bf16_f32 v{Q(qt,p)+2*h+1}, v{t0+2}, v{t0+3}")
            a(f"s_add_u32 s35, s39, {(p*12+qt)*1024}")
            a(f"buffer_store_dwordx4 {vr(Q(qt,p))}, v52, s[20:23], s35 offen{o.get('fo','')}")
    st(a)


def k2_body(a, o, st):
    fw = o.get("fw2", ""); fo = o.get("fo2", "")
    decode_wg(a)
    a("s_load_dwordx2 s[46:47], s[36:37], 32")
    a("s_load_dwordx2 s[48:49], s[0:1], 96")
    a("v_and_b32 v1, 63, v0\nv_lshrrev_b32 v2, 6, v0")
    a("v_lshrrev_b32 v3, 4, v1")
    a("v_readfirstlane_b32 s24, v2")
    a("v_and_b32 v4, 15, v1")
    a("s_lshl_b32 s29, s26, 2\ns_lshl_b32 s3, s25, 1\ns_add_u32 s29, s29, s3")
    if o.get("norot2"): a("s_mov_b32 s29, 0")
    a("s_and_b32 s29, s29, 15")
    a("s_lshl_b32 s32, s24, 12")
    a("s_lshl_b32 s35, s25, 8")
    a("s_lshl_b32 s3, s24, 4\ns_lshl_b32 s34, s27, 10\ns_add_u32 s3, s3, s34")
    for i in range(4):
        a(f"v_add_u32 v5, {4*(i&1)}, v3\nv_lshlrev_b32 v5, 1, v5\nv_xor_b32 v5, v5, v4\nv_lshlrev_b32 v5, 4, v5")
        a(f"v_add_u32 v6, s3, v3\nv_add_u32 v6, {4*i}, v6\nv_lshlrev_b32 v6, 11, v6")
        a(f"v_add3_u32 v5, v5, v6, s35\nv_subrev_u32 v{8+i}, {1024*i}, v5")
    a("v_lshlrev_b32 v52, 4, v1")
    a("s_lshl_b32 s3, s28, 2\ns_add_u32 s3, s3, s26\ns_lshl_b32 s3, s3, 2\ns_add_u32 s3, s3, s27\ns_lshl_b32 s3, s3, 3")
    a(f"s_mul_i32 s38, s3, 49152\ns_mul_i32 s3, s24, 3072\ns_add_u32 s38, s38, s3\ns_add_u32 s38, s38, {O_WS}")
    a("s_lshl_b32 s3, s28, 2\ns_add_u32 s3, s3, s26\ns_lshl_b32 s3, s3, 3\ns_add_u32 s3, s3, s25\ns_lshl_b32 s3, s3, 2\ns_add_u32 s3, s3, s24\ns_lshl_b32 s3, s3, 2\ns_add_u32 s3, s3, s27")
    a(f"s_mul_i32 s39, s3, 12288\ns_add_u32 s39, s39, {P_WS}")
    a("s_waitcnt lgkmcnt(0)")
    srd(a, 8, 46, 47, W_BYTES)
    srd(a, 20, 48, 49, P_WS + P_WS_BYTES)
    st.real(a, 60); st(a)

    def stage_scalars():
        return ("s_lshl_b32 s30, s29, 17\ns_mul_i32 s31, s29, 24576\ns_add_u32 s31, s31, s38\ns_add_u32 s34, s31, 12288\n"
                "s_add_u32 s29, s29, 1\ns_and_b32 s29, s29, 15")
    BB = lambda t, kk, qt: 64 + (t % 4) * 24 + kk * 12 + qt * 4

    def dma_groups(t):
        buf = t % 3
        g = []
        for i in range(4):
            g.append(f"buffer_load_dwordx4 v{8+i}, s[8:11], s30 offen offset:{1024*i}{fw} lds")
        for kk in range(2):
            for qt in range(3):
                g.append(f"buffer_load_dwordx4 {ar(BB(t,kk,qt))}, v52, s[20:23], s{31 if kk==0 else 34} offen offset:{1024*qt}{fo}")
        return g, f"s_add_u32 m0, s32, {buf*16384}"

    for s in range(3):
        a(stage_scalars())
        g, m0 = dma_groups(s)
        a(m0 + "\ns_nop 0")
        for x in g: a(x)
    a("v_lshrrev_b32 v5, 2, v4\nv_and_b32 v6, 3, v1")
    a("v_lshl_add_u32 v7, v3, 2, v5\nv_lshlrev_b32 v2, 8, v7\nv_lshl_add_u32 v2, v6, 3, v2")
    a("v_and_b32 v7, 7, v7\nv_lshl_add_u32 v20, v7, 5, v2")
    for dt in range(1, 8):
        a(f"v_xor_b32 v{20+dt}, {dt*32}, v20")

    def reads(t, kk, dst):
        buf = t % 3
        r = []
        for dt in range(8):
            for hf in range(2):
                r.append(f"ds_read_b64_tr_b16 {ar(32*dst+4*dt+2*hf,2)}, v{20+dt} offset:{buf*16384+kk*8192+hf*4096}")
        return r
    a("s_waitcnt vmcnt(20)\ns_barrier")
    for r in reads(0, 0, 0): a(r)
    a("s_waitcnt lgkmcnt(0)")
    st(a)
    NST = 16
    for t in range(NST):
        fill = reads(t, 1, 1)
        extra = []
        if 1 <= t and t + 2 < NST:
            g, m0 = dma_groups(t + 2)
            extra = [(1, g[5]), (6, g[6]), (11, g[7]), (16, g[8]), (21, g[9])]
        fl = fill + [""] * (24 - len(fill))
        for s, gtxt in extra:
            fl[s] = (fl[s] + "\n" + gtxt) if fl[s] else gtxt
        interleave(a, gemm_mfmas(0, [ar(BB(t, 0, q)) for q in range(3)], t == 0), fl)
        if t < NST - 1:
            n = 10 if t + 2 < NST else 0
            a(f"s_waitcnt vmcnt({n}) lgkmcnt(0)\ns_barrier")
        else:
            a("s_waitcnt lgkmcnt(0)")
        extra = []
        fill = reads(t + 1, 0, 0) if t + 1 < NST else []
        if t + 3 < NST:
            g, m0 = dma_groups(t + 3)
            extra = [(0, stage_scalars() + "\n" + m0), (1, g[0]), (6, g[1]), (11, g[2]), (16, g[3]), (21, g[4])]
        fl = fill + [""] * (24 - len(fill))
        for s, gtxt in extra:
            fl[s] = (fl[s] + "\n" + gtxt) if fl[s] else gtxt
        interleave(a, gemm_mfmas(32, [ar(BB(t, 1, q)) for q in range(3)], False), fl)
        if t + 1 < NST:
            a("s_waitcnt lgkmcnt(0)")
        if t in (3, 7, 11): st(a)
    st(a)
    a("s_nop 7")
    Q = lambda qt, p: 100 + (qt * 4 + p) * 4
    for qt in range(3):
        for p in range(4):
            for h in range(2):
                t0 = acc(2 * p + h, qt)
                a(f"v_cvt_pk_bf16_f32 v{Q(qt,p)+2*h}, v{t0}, v{t0+1}")
                a(f"v_cvt_pk_bf16_f32 v{Q(qt,p)+2*h+1}, v{t0+2}, v{t0+3}")
            a(f"s_add_u32 s35, s39, {(p*3+qt)*1024}")
            a(f"buffer_store_dwordx4 {vr(Q(qt,p))}, v52, s[20:23], s35 offen{o.get('fp','')}")
    st(a)


def k3_body(a, o, st):
    a("s_load_dwordx2 s[48:49], s[0:1], 96")
    a("s_load_dwordx2 s[46:47], s[0:1], 80")
    a("v_and_b32 v1, 63, v0\nv_lshrrev_b32 v2, 6, v0")
    a("v_lshrrev_b32 v3, 4, v1")
    a("v_readfirstlane_b32 s24, v2")
    a("v_and_b32 v4, 15, v1")
    a("v_lshlrev_b32 v52, 4, v1")
    a("s_lshr_b32 s25, s2, 2\ns_and_b32 s26, s2, 3")
    a("s_lshl_b32 s3, s25, 2\ns_add_u32 s3, s3, s24\ns_lshl_b32 s3, s3, 2")
    a(f"s_mul_i32 s38, s3, 12288\ns_mul_i32 s3, s26, 3072\ns_add_u32 s38, s38, s3\ns_add_u32 s38, s38, {P_WS}")
    a("s_lshr_b32 s28, s25, 5\ns_lshr_b32 s27, s25, 3\ns_and_b32 s27, s27, 3\ns_and_b32 s29, s25, 7")
    a("s_mul_i32 s3, s27, 192\ns_mul_i32 s30, s24, 48\ns_add_u32 s3, s3, s30")
    a("v_add_u32 v5, s3, v4\nv_lshlrev_b32 v5, 12, v5")
    a("v_and_b32 v6, 1, v3\nv_lshlrev_b32 v6, 5, v6\nv_lshrrev_b32 v7, 1, v3\nv_lshl_add_u32 v6, v7, 4, v6")
    a("s_lshl_b32 s3, s28, 11\ns_lshl_b32 s30, s29, 8\ns_add_u32 s3, s3, s30\ns_lshl_b32 s30, s26, 6\ns_add_u32 s3, s3, s30")
    a("v_add3_u32 v53, v5, v6, s3")
    a("s_waitcnt lgkmcnt(0)")
    srd(a, 20, 48, 49, P_WS + P_WS_BYTES)
    srd(a, 8, 46, 47, OUT_BYTES)
    for src in range(4):
        a(f"s_add_u32 s35, s38, {src*12288}")
        for qt in range(3):
            a(f"buffer_load_dwordx4 {vr(64+(src*3+qt)*4)}, v52, s[20:23], s35 offen offset:{qt*1024}")
    for qt in range(3):
        a(f"s_waitcnt vmcnt({ [2,1,0][qt] })" if False else "")
    a("s_waitcnt vmcnt(0)")
    for qt in range(3):
        for r in range(4):
            a(f"v_lshlrev_b32 v{120+2*r}, 16, v{64+qt*4+r}\nv_and_b32 v{121+2*r}, 0xffff0000, v{64+qt*4+r}")
        for src in range(1, 4):
            for r in range(4):
                x = 64 + (src * 3 + qt) * 4 + r
                a(f"v_lshlrev_b32 v128, 16, v{x}\nv_and_b32 v129, 0xffff0000, v{x}")
                a(f"v_add_f32 v{120+2*r}, v{120+2*r}, v128\nv_add_f32 v{121+2*r}, v{121+2*r}, v129")
        d = 132 + 4 * qt
        for r in range(4):
            a(f"v_cvt_pk_bf16_f32 v{d+r}, v{120+2*r}, v{121+2*r}")
        a("s_nop 1")
        a(f"v_permlane16_swap_b32 v{d}, v{d+2}\nv_permlane16_swap_b32 v{d+1}, v{d+3}")
        a(f"s_mov_b32 s35, {qt*16*4096}")
        a(f"buffer_store_dwordx4 {vr(d)}, v53, s[8:11], s35 offen")


def build(o):
    diag = o.get("diag", False)
    txt = header([("k1_kernel", 256, 256, 163840), ("k2_kernel", 256, 256, 49152), ("k3_kernel", 256, 256, 0)],
                 comment="two MHA blocks: k1 = q-projection + attention, k2 = split-k output projection, k3 = reduction")
    descs = []
    for idx, (name, body, vg, ac) in enumerate([("k1_kernel", k1_body, 512, 256), ("k2_kernel", k2_body, 512, 256), ("k3_kernel", k3_body, 160, 160)]):
        a = A()
        st = Stamp(diag and idx < 2)
        a(f"s_cmp_ge_u32 s2, 256\ns_cbranch_scc1 L_end_{name}")
        body(a, o, st)
        st.dump(a, idx, 24, 52, 48, 49)
        a.lab(f"L_end_{name}")
        a("s_endpgm")
        txt += kstart(name) + a.text()
        descs.append(kdesc(name, vg, ac))
    txt += rodata(descs)
    return txt


if __name__ == "__main__":
    import json
    o = json.loads(sys.argv[2]) if len(sys.argv) > 2 else {}
    open(sys.argv[1], "w").write(build(o))
```
